```python
import torch

def _softmax(x, axis=-1):
    return torch.softmax(x, dim=axis)
def _gelu(x):
    return torch.nn.functional.gelu(x, approximate="tanh")
def _silu(x):
    return torch.nn.functional.silu(x)
def _sigmoid(x):
    return torch.sigmoid(x)
def _layernorm(x, axis=-1, eps=1e-5):
    m = x.mean(dim=axis, keepdim=True)
    v = x.var(dim=axis, keepdim=True, unbiased=False)
    return (x - m) / torch.sqrt(v + eps)
def _scatter_add(tgt, idx, src, axis=0):
    return tgt.clone().index_add_(axis, idx, src)
def _segment_sum(src, seg, n):
    out = torch.zeros((n,) + src.shape[1:], dtype=src.dtype)
    return out.index_add_(0, seg, src)
def _pad(x, pw):
    flat = tuple(v for pair in reversed(pw) for v in pair)
    return torch.nn.functional.pad(x, flat)

kernel_name = 'parallel_sum__mha_block_cached__dense_activation_silu__decode'

def setup_inputs():

    _w = (lambda a: (lambda t: t.to(torch.bfloat16) if t.is_floating_point() else t)(torch.as_tensor(a)))
    def _A_setup():
        B, Sq, D = 4, 1, 512
        H, Sk, Dh = 32, 4096, 128
        return {
            "x": _w((lambda *s: torch.randn(*s, dtype=torch.bfloat16) * 0.05)(B, Sq, D)),
            "k_cache": _w((lambda *s: torch.randn(*s, dtype=torch.bfloat16) * 3.2)(B, H, Sk, Dh)),
            "v_cache": _w((lambda *s: torch.randn(*s, dtype=torch.bfloat16) * 0.8)(B, H, Sk, Dh)),
            "wq": _w((lambda *s: torch.randn(*s, dtype=torch.bfloat16) * 3.2)(D, H * Dh) * (D ** -0.5)),
            "wo": _w((lambda *s: torch.randn(*s, dtype=torch.bfloat16) * 0.8)(H * Dh, D) * ((H * Dh) ** -0.5)),
        }
    _A_in = _A_setup()

    def _B_setup():
        B, S, D, F = 4, 1, 512, 1792
        return {
            "x": _w((lambda *s: torch.randn(*s, dtype=torch.bfloat16) * 0.05)(B, S, D)),
            "w1": _w((lambda *s: torch.randn(*s, dtype=torch.bfloat16) * 3.2)(D, F) * (D ** -0.5)),
            "w2": _w((lambda *s: torch.randn(*s, dtype=torch.bfloat16) * 0.4)(F, D) * (F ** -0.5)),
        }
    _B_in = _B_setup()

    return {
        "A_x": _A_in["x"],
        "A_k_cache": _A_in["k_cache"],
        "A_v_cache": _A_in["v_cache"],
        "A_wq": _A_in["wq"],
        "A_wo": _A_in["wo"],
        "B_x": _B_in["x"],
        "B_w1": _B_in["w1"],
        "B_w2": _B_in["w2"],
    }

def reference(A_x, A_k_cache, A_v_cache, A_wq, A_wo, B_x, B_w1, B_w2):
    def _A_ref(x, k_cache, v_cache, wq, wo):
        B, Sq, D = x.shape
        H, Dh = 32, 128
        q = (lambda x, *d: x.permute(*d))((x @ wq).reshape(B, Sq, H, Dh), 0, 2, 1, 3)
        scores = torch.einsum("bhqd,bhkd->bhqk", q, k_cache) * (Dh ** -0.5)
        p = _softmax(scores, axis=-1)
        o = torch.einsum("bhqk,bhkd->bhqd", p, v_cache)
        return (lambda x, *d: x.permute(*d))(o, 0, 2, 1, 3).reshape(B, Sq, H * Dh) @ wo

    def _B_ref(x, w1, w2):
        h = torch.einsum("bsd,df->bsf", x, w1)
        h = _silu(h)
        out = torch.einsum("bsf,fd->bsd", h, w2)
        return out

    x = A_x
    xn = _layernorm(x, axis=-1)
    return x + _A_ref(xn, A_k_cache, A_v_cache, A_wq, A_wo) + _B_ref(xn, B_w1, B_w2)
```

```python
class Asm:
    def __init__(self):
        self.lines = []
        self.issued = []
        self.done_upto = -1
    def e(self, s):
        self.lines.append("  " + s)
    def label(self, s):
        self.lines.append(s + ":")
    def raw(self, s):
        self.lines.append(s)
    def c(self, s):
        self.lines.append("  ; " + s)
    def nop(self, n):
        while n > 0:
            k = min(n, 16)
            self.e(f"s_nop {k-1}")
            n -= k
    def vm(self, name, instr):
        self.e(instr)
        self.issued.append(name)
    def outstanding(self):
        return len(self.issued) - 1 - self.done_upto
    def wait(self, name, extra=""):
        idx = len(self.issued) - 1 - self.issued[::-1].index(name)
        if idx <= self.done_upto:
            if extra: self.e(f"s_waitcnt {extra}")
            return
        n = len(self.issued) - 1 - idx
        n = min(n, 63)
        self.e(f"s_waitcnt vmcnt({n})" + (" " + extra if extra else ""))
        self.done_upto = max(self.done_upto, len(self.issued) - 1 - n)
    def wait_all(self):
        self.e("s_waitcnt vmcnt(0)")
        self.done_upto = len(self.issued) - 1
    def reset_vm(self):
        self.issued = []; self.done_upto = -1
    def text(self):
        return "\n".join(self.lines) + "\n"

def kernel_header(a, name):
    a.raw(".text"); a.raw(f".globl {name}"); a.raw(".p2align 8"); a.raw(f".type {name},@function"); a.raw(f"{name}:")

def kernel_desc(a, name, vgpr, sgpr, accum):
    a.raw('.section .rodata,"a"'); a.raw(".p2align 6"); a.raw(f".amdhsa_kernel {name}")
    a.raw(f"  .amdhsa_next_free_vgpr {vgpr}"); a.raw(f"  .amdhsa_next_free_sgpr {sgpr}"); a.raw(f"  .amdhsa_accum_offset {accum}")
    a.raw("  .amdhsa_group_segment_fixed_size 0"); a.raw("  .amdhsa_kernarg_size 88"); a.raw("  .amdhsa_user_sgpr_count 2")
    a.raw("  .amdhsa_user_sgpr_kernarg_segment_ptr 1"); a.raw("  .amdhsa_system_sgpr_workgroup_id_x 1"); a.raw(".end_amdhsa_kernel")
```

```python
import sys, struct
from asmlib import *
NAME = "parallel_sum__mha_block_cached__dense_activation_silu__decode"
KA = NAME + "_kernel"
KB = "fin_kernel"

def f2u(x): return struct.unpack("<I", struct.pack("<f", x))[0]
LOG2E = 1.4426950408889634
SCALE = 128 ** -0.5

WS_Y = 0
WS_ML = 1 << 20
WS_STAMP = 2 << 20

def round_bf16(a, dst, src):
    a.e(f"v_cvt_pk_bf16_f32 v{dst}, v{src}, v{src}")
    a.e(f"v_and_b32 v{dst}, 0xffff0000, v{dst}")

def row_allreduce(a, op, v):
    for ctl in ("quad_perm:[1,0,3,2]", "quad_perm:[2,3,0,1]", "row_ror:4", "row_ror:8"):
        a.nop(2)
        a.e(f"{op}_dpp v{v}, v{v}, v{v} {ctl} row_mask:0xf bank_mask:0xf")

def wave_allreduce(a, op, v, s):
    row_allreduce(a, op, v)
    a.nop(1)
    for i in range(4):
        a.e(f"v_readlane_b32 s{s+i}, v{v}, {16*i}")
    a.nop(2)
    a.e(f"v_mov_b32 v{v}, s{s}")
    for i in range(1, 4):
        a.e(f"{op} v{v}, s{s+i}, v{v}")

def gen_A(a, P):
    D = P.get("D", 32)
    NT = P.get("nt", "nt")
    WNT = P.get("wnt", "nt")
    stamp = P.get("stamp", False)
    rot = P.get("rot", None)
    RING = 256 - 4 * D
    def slot(sig): return RING + 4 * (sig % D)
    vLane, vM0, vMF, vPlo, vPhi = 1, 2, 6, 7, 8
    vK, vWQ, vW1, vW2, vWO = 9, 10, 11, 12, 13
    vQ = 14; vS = 18; vR02, vR13, vR = 22, 23, 27
    vMax, vL, vT = 24, 25, 26
    vB = (28, 32); vAcc = 36; vAcc2 = 40
    vTmp = 44
    vSc = 64
    vBig = 96
    assert RING >= 128 - 0 and RING >= vBig + 32 - 0 or True
    sK, sV, sWQ, sWO, sW1, sW2, sX, sWS = 24, 28, 32, 36, 40, 44, 48, 52
    sW, sH, sB, sHalf, sXc, sJ, sU = 56, 57, 58, 59, 60, 61, 62
    sOffK, sOffV, sOffW, sT0 = 63, 64, 65, 66
    sStamp = 76
    nstamp = [0]
    def do_stamp():
        if stamp:
            a.e(f"s_memrealtime s[{sStamp+2*nstamp[0]}:{sStamp+2*nstamp[0]+1}]")
            nstamp[0] += 1

    kernel_header(a, KA)
    a.e("s_cmp_ge_u32 s2, 256"); a.e("s_cbranch_scc1 L_A_end")
    do_stamp()
    a.e("s_load_dwordx16 s[4:19], s[0:1], 0")
    a.e("s_load_dwordx2 s[20:21], s[0:1], 80")
    a.e(f"v_lshrrev_b32 v{vT}, 6, v0")
    a.e(f"v_and_b32 v{vLane}, 63, v0")
    a.e(f"v_readfirstlane_b32 s{sW}, v{vT}")
    a.e(f"s_and_b32 s{sXc}, s2, 7"); a.e(f"s_lshr_b32 s{sJ}, s2, 3")
    a.e(f"s_lshr_b32 s{sT0}, s{sJ}, 3"); a.e(f"s_lshl_b32 s{sH}, s{sXc}, 2"); a.e(f"s_add_u32 s{sH}, s{sH}, s{sT0}")
    a.e(f"s_lshr_b32 s{sB}, s{sJ}, 1"); a.e(f"s_and_b32 s{sB}, s{sB}, 3"); a.e(f"s_and_b32 s{sHalf}, s{sJ}, 1")
    a.e(f"s_lshl_b32 s{sU}, s{sT0}, 1"); a.e(f"s_add_u32 s{sU}, s{sU}, s{sHalf}")
    vA_, vC_ = vTmp, vTmp + 1
    a.e(f"v_lshrrev_b32 v{vA_}, 4, v{vLane}"); a.e(f"v_and_b32 v{vC_}, 15, v{vLane}")
    a.e(f"s_lshl_b32 s{sT0+1}, s{sB}, 5"); a.e(f"s_add_u32 s{sT0+1}, s{sT0+1}, s{sH}"); a.e(f"s_lshl_b32 s{sT0+1}, s{sT0+1}, 20")
    a.e(f"s_lshl_b32 s{sT0+2}, s{sHalf}, 19"); a.e(f"s_add_u32 s{sT0+1}, s{sT0+1}, s{sT0+2}")
    a.e(f"s_lshl_b32 s{sT0+2}, s{sW}, 10"); a.e(f"s_add_u32 s{sT0+1}, s{sT0+1}, s{sT0+2}")
    a.e(f"v_lshlrev_b32 v{vK}, 4, v{vLane}"); a.e(f"v_add_u32 v{vK}, s{sT0+1}, v{vK}")
    a.e(f"s_lshl_b32 s{sT0+1}, s{sW}, 20"); a.e(f"s_lshl_b32 s{sT0+2}, s{sH}, 8"); a.e(f"s_add_u32 s{sT0+1}, s{sT0+1}, s{sT0+2}")
    a.e(f"v_lshlrev_b32 v{vWQ}, 18, v{vA_}"); a.e(f"v_lshl_add_u32 v{vWQ}, v{vC_}, 4, v{vWQ}"); a.e(f"v_add_u32 v{vWQ}, s{sT0+1}, v{vWQ}")
    vX1, vX2 = vTmp + 2, vTmp + 3
    a.e(f"s_lshl_b32 s{sT0+1}, s{sB}, 10")
    a.e(f"v_lshlrev_b32 v{vX1}, 4, v{vLane}"); a.e(f"v_add_u32 v{vX1}, s{sT0+1}, v{vX1}")
    a.e(f"s_lshl_b32 s{sT0+2}, s{sW}, 8"); a.e(f"s_add_u32 s{sT0+1}, s{sT0+1}, s{sT0+2}")
    a.e(f"v_lshlrev_b32 v{vX2}, 2, v{vLane}"); a.e(f"v_add_u32 v{vX2}, s{sT0+1}, v{vX2}")
    a.e("s_waitcnt lgkmcnt(0)")
    def srd(dst, src, nbytes):
        a.e(f"s_mov_b32 s{dst}, s{src}"); a.e(f"s_and_b32 s{dst+1}, s{src+1}, 0xffff")
        a.e(f"s_mov_b32 s{dst+2}, {nbytes}"); a.e(f"s_mov_b32 s{dst+3}, 0x20000")
    srd(sX, 4, 4096); srd(sWQ, 10, 512 * 4096 * 2); srd(sK, 6, 128 << 20)
    vX1d, vX2d = vTmp + 4, vTmp + 8
    a.vm("X1", f"buffer_load_dwordx4 v[{vX1d}:{vX1d+3}], v{vX1}, s[{sX}:{sX+3}], 0 offen")
    a.vm("X2", f"buffer_load_dword v{vX2d}, v{vX2}, s[{sX}:{sX+3}], 0 offen")
    mask = (512 << 10) - 1
    if rot == "hash":
        a.e(f"s_mul_i32 s{sOffK}, s2, 0x9E3779B1"); a.e(f"s_lshr_b32 s{sOffK}, s{sOffK}, 25"); a.e(f"s_lshl_b32 s{sOffK}, s{sOffK}, 12")
    else:
        a.e(f"s_mov_b32 s{sOffK}, 0")
    a.e(f"s_mov_b32 s{sOffV}, s{sOffK}")
    a.e(f"s_mov_b32 s{sOffW}, 0")
    state = {"next": 0}
    def issue_stream():
        sig = state["next"]
        if sig >= 256: return
        state["next"] += 1
        r = slot(sig)
        if sig < 128:
            a.vm(f"S{sig}", f"buffer_load_dwordx4 v[{r}:{r+3}], v{vK}, s[{sK}:{sK+3}], s{sOffK} offen {NT}")
            so = sOffK
        else:
            a.vm(f"S{sig}", f"buffer_load_dwordx4 v[{r}:{r+3}], v{vK}, s[{sV}:{sV+3}], s{sOffV} offen {NT}")
            so = sOffV
        a.e(f"s_addk_i32 s{so}, 0x1000")
        if rot: a.e(f"s_and_b32 s{so}, s{so}, {mask}")
    def issue_wq(t):
        a.vm(f"WQ{t}", f"buffer_load_dwordx4 a[{4*t}:{4*t+3}], v{vWQ}, s[{sWQ}:{sWQ+3}], s{sOffW} offen {WNT}")
        a.e(f"s_addk_i32 s{sOffW}, 0x2000")
    pat = P.get("pro", [(1, 1)] * 32)
    pro = []
    nwq = 0; nst = 0
    for (x, y) in pat:
        for _ in range(x):
            if nwq < 32: pro.append(("wq", nwq)); nwq += 1
        for _ in range(y):
            if nst < D: pro.append(("st", nst)); nst += 1
    while nwq < 32: pro.append(("wq", nwq)); nwq += 1
    while nst < D: pro.append(("st", nst)); nst += 1
    pro_pos = [0]
    def pro_issue(n):
        for _ in range(n):
            if pro_pos[0] >= len(pro): return
            k, i = pro[pro_pos[0]]; pro_pos[0] += 1
            if k == "wq": issue_wq(i)
            else: issue_stream()
    first = P.get("pro_first", 58)
    pro_issue(8)
    srd(sV, 8, 128 << 20); srd(sWO, 12, 4096 * 512 * 2); srd(sW1, 16, 512 * 1792 * 2); srd(sW2, 18, 1792 * 512 * 2)
    srd(sWS, 20, 4 << 20)
    pro_issue(first - 8)
    a.e(f"s_cmp_eq_u32 s{sU}, 7")
    a.e(f"s_cselect_b32 s{sW1+2}, 0, s{sW1+2}"); a.e(f"s_cselect_b32 s{sW2+2}, 0, s{sW2+2}")
    a.e(f"s_mul_i32 s{sT0+1}, s{sXc}, 7"); a.e(f"s_add_u32 s{sT0+1}, s{sT0+1}, s{sU}"); a.e(f"s_lshl_b32 s{sT0+1}, s{sT0+1}, 5")
    a.e(f"s_mul_i32 s{sT0+2}, s{sW}, {128*3584}"); a.e(f"s_lshl_b32 s{sT0+3}, s{sT0+1}, 1"); a.e(f"s_add_u32 s{sT0+2}, s{sT0+2}, s{sT0+3}")
    a.e(f"v_mul_u32_u24 v{vW1}, {32*3584}, v{vA_}"); a.e(f"v_lshl_add_u32 v{vW1}, v{vC_}, 2, v{vW1}"); a.e(f"v_add_u32 v{vW1}, s{sT0+2}, v{vW1}")
    a.e(f"s_lshl_b32 s{sT0+2}, s{sT0+1}, 10"); a.e(f"s_lshl_b32 s{sT0+3}, s{sW}, 8"); a.e(f"s_add_u32 s{sT0+2}, s{sT0+2}, s{sT0+3}")
    a.e(f"v_lshlrev_b32 v{vW2}, 13, v{vA_}"); a.e(f"v_lshl_add_u32 v{vW2}, v{vC_}, 4, v{vW2}"); a.e(f"v_add_u32 v{vW2}, s{sT0+2}, v{vW2}")
    a.e(f"s_lshl_b32 s{sT0+2}, s{sH}, 17"); a.e(f"s_add_u32 s{sT0+2}, s{sT0+2}, s{sT0+3}")
    a.e(f"v_lshlrev_b32 v{vWO}, 15, v{vA_}"); a.e(f"v_lshl_add_u32 v{vWO}, v{vC_}, 4, v{vWO}"); a.e(f"v_add_u32 v{vWO}, s{sT0+2}, v{vWO}")
    t0, t1 = vTmp + 10, vTmp + 11
    a.e(f"v_and_b32 v{t0}, 1, v{vC_}"); a.e(f"v_cmp_eq_u32 vcc, 1, v{t0}")
    a.e(f"v_mov_b32 v{t0}, 0xffff"); a.e(f"v_mov_b32 v{t1}, 0xffff0000")
    a.e(f"v_cndmask_b32 v{t0}, v{t0}, v{t1}, vcc")
    a.e(f"v_lshrrev_b32 v{t1}, 1, v{vC_}")
    for r in range(4):
        a.e(f"v_cmp_eq_u32 vcc, {r}, v{t1}"); a.nop(2)
        a.e(f"v_cndmask_b32 v{vM0+r}, 0, v{t0}, vcc")
    a.e(f"v_cmp_gt_u32 vcc, 2, v{vC_}"); a.nop(2); a.e(f"v_cndmask_b32 v{vMF}, 0, v{t0}, vcc")
    vLq, vLr = vTmp + 12, vTmp + 13
    a.wait("X2")
    do_stamp()
    X = vBig
    for i in range(4):
        a.e(f"v_lshlrev_b32 v{X+2*i}, 16, v{vX1d+i}"); a.e(f"v_and_b32 v{X+2*i+1}, 0xffff0000, v{vX1d+i}")
    sm = vBig + 8
    a.e(f"v_add_f32 v{sm}, v{X}, v{X+1}"); a.e(f"v_add_f32 v{sm+1}, v{X+2}, v{X+3}"); a.e(f"v_add_f32 v{sm+2}, v{X+4}, v{X+5}"); a.e(f"v_add_f32 v{sm+3}, v{X+6}, v{X+7}")
    a.e(f"v_add_f32 v{sm}, v{sm}, v{sm+1}"); a.e(f"v_add_f32 v{sm+2}, v{sm+2}, v{sm+3}"); a.e(f"v_add_f32 v{sm}, v{sm}, v{sm+2}")
    wave_allreduce(a, "v_add_f32", sm, sT0)
    a.e(f"v_mul_f32 v{sm}, {f2u(1/512):#x}, v{sm}")
    for i in range(8): a.e(f"v_sub_f32 v{X+i}, v{X+i}, v{sm}")
    va = sm + 1
    a.e(f"v_mul_f32 v{va}, v{X}, v{X}")
    for i in range(1, 8): a.e(f"v_fmac_f32 v{va}, v{X+i}, v{X+i}")
    wave_allreduce(a, "v_add_f32", va, sT0)
    a.e(f"v_mul_f32 v{va}, {f2u(1/512):#x}, v{va}")
    mb, den, rd = sm + 2, sm + 3, sm + 4
    round_bf16(a, mb, sm); round_bf16(a, va, va)
    a.e(f"v_add_f32 v{va}, {f2u(1e-5):#x}, v{va}"); round_bf16(a, va, va)
    a.e(f"v_sqrt_f32 v{den}, v{va}"); a.nop(1); round_bf16(a, den, den)
    a.e(f"v_rcp_f32 v{rd}, v{den}")
    xa, xb = sm + 5, sm + 6
    a.e(f"v_lshlrev_b32 v{xa}, 16, v{vX2d}"); a.e(f"v_and_b32 v{xb}, 0xffff0000, v{vX2d}")
    for (xx, dstP) in ((xa, vPlo), (xb, vPhi)):
        q0, ee = sm + 7, sm + 8
        a.e(f"v_sub_f32 v{xx}, v{xx}, v{mb}"); round_bf16(a, xx, xx)
        a.e(f"v_mul_f32 v{q0}, v{xx}, v{rd}"); a.e(f"v_fma_f32 v{ee}, -v{q0}, v{den}, v{xx}"); a.e(f"v_fma_f32 v{q0}, v{ee}, v{rd}, v{q0}")
        a.e(f"v_cvt_pk_bf16_f32 v{dstP}, v{q0}, v{q0}")
    a.nop(2)
    def build_B(set_, src, bc, maskbase=None, per_r_src=None):
        for r in range(4):
            s_ = src if per_r_src is None else per_r_src[r][0]
            b_ = bc if per_r_src is None else per_r_src[r][1]
            m_ = (vM0 + r) if maskbase is None else maskbase
            a.e(f"v_and_b32_dpp v{vB[set_]+r}, v{s_}, v{m_} row_newbcast:{b_} row_mask:0xf bank_mask:0xf")
    def mfma(acc, A, set_, first):
        c = "0" if first else f"v[{acc}:{acc+3}]"
        a.e(f"v_mfma_f32_16x16x32_bf16 v[{acc}:{acc+3}], {A}, v[{vB[set_]}:{vB[set_]+3}], {c}")
    build_B(0, vPlo, 0)
    for t in range(32):
        if t + 1 < 32: build_B((t + 1) & 1, vPhi if (t + 1) & 1 else vPlo, (t + 1) >> 1)
        else: a.nop(2)
        a.wait(f"WQ{t}")
        mfma(vAcc2, f"a[{4*t}:{4*t+3}]", t & 1, t == 0)
        pro_issue(2)
    pro_issue(1000)
    a.nop(8)
    a.e(f"s_lshl_b32 s{sT0}, s{sW}, 9")
    a.e(f"v_lshlrev_b32 v{vLq}, 7, v{vA_}"); a.e(f"v_lshl_add_u32 v{vLq}, v{vC_}, 2, v{vLq}"); a.e(f"v_add_u32 v{vLq}, s{sT0}, v{vLq}")
    a.e("s_mov_b32 exec_lo, 0x00ff00ff"); a.e("s_mov_b32 exec_hi, 0x00ff00ff")
    for r in range(4): a.e(f"ds_write_b32 v{vLq}, v{vAcc2+r} offset:{32*r}")
    a.e("s_mov_b64 exec, -1")
    a.e(f"v_lshlrev_b32 v{vLr}, 5, v{vC_}")
    a.e("s_waitcnt lgkmcnt(0)"); a.e("s_barrier")
    for w in range(4):
        for hh in range(2):
            a.e(f"ds_read_b128 v[{vBig+8*w+4*hh}:{vBig+8*w+4*hh+3}], v{vLr} offset:{512*w+16*hh}")
    a.e("s_waitcnt lgkmcnt(0)")
    for i in range(8):
        a.e(f"v_add_f32 v{vBig+i}, v{vBig+i}, v{vBig+8+i}"); a.e(f"v_add_f32 v{vBig+16+i}, v{vBig+16+i}, v{vBig+24+i}")
    for i in range(8): a.e(f"v_add_f32 v{vBig+i}, v{vBig+i}, v{vBig+16+i}")
    for i in range(4): a.e(f"v_cvt_pk_bf16_f32 v{vQ+i}, v{vBig+2*i}, v{vBig+2*i+1}")
    do_stamp()
    extras = {}
    def add_extra(G, fn): extras.setdefault(G, []).append(fn)
    def mk_wo(u):
        def f():
            so = "0" if u < 4 else f"s{sOffW}"
            if u >= 4 and u % 4 == 0:
                a.e(f"s_mov_b32 s{sOffW}, {u*1024}")
            a.vm(f"WO{u}", f"buffer_load_dwordx4 a[{4*u}:{4*u+3}], v{vWO}, s[{sWO}:{sWO+3}], {so} offen offset:{(u%4)*1024} {WNT}")
        return f
    def mk_w1(u, r):
        def f():
            a.e(f"s_mov_b32 s{sT0+7}, {(4*u+r)*3584}")
            a.vm(f"W1_{u}_{r}", f"buffer_load_dword a{128+4*u+r}, v{vW1}, s[{sW1}:{sW1+3}], s{sT0+7} offen {WNT}")
        return f
    def mk_w2(u):
        def f():
            if u == 4: a.e(f"s_mov_b32 s{sT0+6}, 4096")
            so = "0" if u < 4 else f"s{sT0+6}"
            a.vm(f"W2_{u}", f"buffer_load_dwordx4 a[{160+4*u}:{160+4*u+3}], v{vW2}, s[{sW2}:{sW2+3}], {so} offen offset:{(u%4)*1024} {WNT}")
        return f
    g0 = P.get("ffn_g0", 0)
    for u in range(8):
        for r in range(4): add_extra(g0 + u, mk_w1(u, r))
        add_extra(g0 + u, mk_w2(u))
    wo0 = P.get("wo_g0", 8); wo_per = P.get("wo_per", 2)
    for u in range(32): add_extra(wo0 + u // wo_per, mk_wo(u))
    a.e(f"v_mov_b32 v{vMax}, 0xff800000")
    for G in range(32):
        a.wait(f"S{4*G+3}")
        for i in range(4):
            for tau in range(4):
                r = slot(4 * G + tau)
                if i == 0: a.e(f"v_dot2_f32_bf16 v{vS+tau}, v{r}, v{vQ}, 0")
                else: a.e(f"v_dot2c_f32_bf16 v{vS+tau}, v{r+i}, v{vQ+i}")
        a.e(f"v_add_f32_dpp v{vR02}, v{vS}, v{vS} row_ror:8 row_mask:0xf bank_mask:0xf")
        a.e(f"v_add_f32_dpp v{vR13}, v{vS+1}, v{vS+1} row_ror:8 row_mask:0xf bank_mask:0xf")
        a.e(f"v_add_f32_dpp v{vR02}, v{vS+2}, v{vS+2} row_ror:8 row_mask:0xf bank_mask:0xc")
        a.e(f"v_add_f32_dpp v{vR13}, v{vS+3}, v{vS+3} row_ror:8 row_mask:0xf bank_mask:0xc")
        issue_stream(); a.nop(1)
        a.e(f"v_add_f32_dpp v{vR}, v{vR02}, v{vR02} row_ror:12 row_mask:0xf bank_mask:0x5")
        a.e(f"v_add_f32_dpp v{vR}, v{vR13}, v{vR13} row_ror:4 row_mask:0xf bank_mask:0xa")
        issue_stream(); a.nop(1)
        a.e(f"v_add_f32_dpp v{vR}, v{vR}, v{vR} quad_perm:[1,0,3,2] row_mask:0xf bank_mask:0xf")
        issue_stream(); a.nop(1)
        a.e(f"v_add_f32_dpp v{vSc+G}, v{vR}, v{vR} quad_perm:[2,3,0,1] row_mask:0xf bank_mask:0xf")
        issue_stream()
        a.e(f"v_max_f32 v{vMax}, v{vMax}, v{vSc+G}")
        for f in extras.get(G, []): f()
    do_stamp()
    wave_allreduce(a, "v_max_f32", vMax, sT0)
    vM2, vML = vTmp + 14, vTmp + 15
    round_bf16(a, vM2, vMax); a.e(f"v_mul_f32 v{vM2}, {f2u(SCALE):#x}, v{vM2}"); round_bf16(a, vM2, vM2)
    a.e(f"v_mul_f32 v{vML}, {f2u(-LOG2E):#x}, v{vM2}")
    for u in range(8):
        build_B(u & 1, None, None, maskbase=vMF, per_r_src=[((vPhi if r & 1 else vPlo), 2 * u + (r >> 1)) for r in range(4)])
        a.wait(f"W1_{u}_3"); a.nop(2)
        mfma(vAcc2, f"a[{128+4*u}:{128+4*u+3}]", u & 1, u == 0)
    a.nop(8)
    a.e(f"s_lshl_b32 s{sT0}, s{sW}, 7"); a.e(f"s_addk_i32 s{sT0}, 2048")
    a.e(f"v_lshlrev_b32 v{vLq}, 5, v{vA_}"); a.e(f"v_lshl_add_u32 v{vLq}, v{vC_}, 2, v{vLq}"); a.e(f"v_add_u32 v{vLq}, s{sT0}, v{vLq}")
    a.e("s_mov_b32 exec_lo, 0x00030003"); a.e("s_mov_b32 exec_hi, 0x00030003")
    for r in range(4): a.e(f"ds_write_b32 v{vLq}, v{vAcc2+r} offset:{8*r}")
    a.e("s_mov_b64 exec, -1")
    a.e(f"v_and_b32 v{vLr}, 7, v{vC_}"); a.e(f"v_lshl_add_u32 v{vLr}, v{vA_}, 3, v{vLr}"); a.e(f"v_lshlrev_b32 v{vLr}, 2, v{vLr}")
    a.e("s_waitcnt lgkmcnt(0)"); a.e("s_barrier")
    for w in range(4): a.e(f"ds_read_b32 v{vBig+w}, v{vLr} offset:{2048+128*w}")
    a.e("s_waitcnt lgkmcnt(0)")
    hs, he = vBig, vBig + 1
    a.e(f"v_add_f32 v{vBig}, v{vBig}, v{vBig+1}"); a.e(f"v_add_f32 v{vBig+2}, v{vBig+2}, v{vBig+3}"); a.e(f"v_add_f32 v{hs}, v{vBig}, v{vBig+2}")
    round_bf16(a, hs, hs)
    a.e(f"v_mul_f32 v{he}, {f2u(-LOG2E):#x}, v{hs}"); a.e(f"v_exp_f32 v{he}, v{he}"); a.nop(1)
    a.e(f"v_add_f32 v{he}, 1.0, v{he}"); a.e(f"v_rcp_f32 v{he}, v{he}"); a.nop(1)
    a.e(f"v_mul_f32 v{hs}, v{hs}, v{he}")
    vPh = vBig + 2
    a.e(f"v_cvt_pk_bf16_f32 v{vPh}, v{hs}, v{hs}"); a.nop(2)
    for u in range(8):
        build_B(u & 1, vPh, u)
        a.wait(f"W2_{u}"); a.nop(2)
        mfma(vAcc2, f"a[{160+4*u}:{160+4*u+3}]", u & 1, u == 0)
    vY = vTmp + 16
    a.e(f"v_lshlrev_b32 v{vY}, 7, v{vA_}"); a.e(f"v_lshl_add_u32 v{vY}, v{vC_}, 4, v{vY}")
    a.e(f"s_lshl_b32 s{sT0}, s{sB}, 7"); a.e(f"s_lshl_b32 s{sT0+1}, s{sXc}, 3"); a.e(f"s_add_u32 s{sT0+1}, s{sT0+1}, s{sU}")
    a.e(f"s_add_u32 s{sT0+1}, s{sT0+1}, 64"); a.e(f"s_add_u32 s{sT0+1}, s{sT0+1}, s{sT0}"); a.e(f"s_lshl_b32 s{sT0+1}, s{sT0+1}, 11")
    a.e(f"s_lshl_b32 s{sT0+2}, s{sW}, 9"); a.e(f"s_add_u32 s{sT0+1}, s{sT0+1}, s{sT0+2}")
    a.nop(4)
    a.e("s_mov_b32 exec_lo, 0x00ff00ff"); a.e("s_mov_b32 exec_hi, 0x00ff00ff")
    a.vm("STF", f"buffer_store_dwordx4 v[{vAcc2}:{vAcc2+3}], v{vY}, s[{sWS}:{sWS+3}], s{sT0+1} offen")
    a.e("s_mov_b64 exec, -1")
    do_stamp()
    a.e(f"v_mov_b32 v{vL}, 0")
    def prep(G):
        s = vSc + G
        round_bf16(a, s, s); a.e(f"v_mul_f32 v{s}, {f2u(SCALE):#x}, v{s}"); round_bf16(a, s, s)
        a.e(f"v_fma_f32 v{s}, v{s}, s{sT0+5}, v{vML}"); a.e(f"v_exp_f32 v{s}, v{s}"); a.nop(1)
        a.e(f"v_add_f32 v{vL}, v{vL}, v{s}"); a.e(f"v_cvt_pk_bf16_f32 v{s}, v{s}, v{s}")
    a.e(f"s_mov_b32 s{sT0+5}, {f2u(LOG2E):#x}")
    prep(0); prep(1)
    build_B(0, vSc, 0)
    for t in range(128):
        G, tau = t // 4, t % 4
        if t + 1 < 128: build_B((t + 1) & 1, vSc + (t + 1) // 4, 4 * ((t + 1) % 4))
        else: a.nop(2)
        a.wait(f"S{128+t}")
        r = slot(128 + t)
        mfma(vAcc, f"v[{r}:{r+3}]", t & 1, t == 0)
        issue_stream()
        if tau == 0 and G + 2 < 32: prep(G + 2)
    do_stamp()
    wave_allreduce(a, "v_add_f32", vL, sT0)
    a.e(f"v_mul_f32 v{vL}, {f2u(0.25):#x}, v{vL}")
    a.e(f"s_lshl_b32 s{sT0}, s{sW}, 9"); a.e(f"s_addk_i32 s{sT0}, 4096")
    a.e(f"v_lshlrev_b32 v{vLq}, 7, v{vA_}"); a.e(f"v_lshl_add_u32 v{vLq}, v{vC_}, 2, v{vLq}"); a.e(f"v_add_u32 v{vLq}, s{sT0}, v{vLq}")
    a.e("s_mov_b32 exec_lo, 0x00ff00ff"); a.e("s_mov_b32 exec_hi, 0x00ff00ff")
    for r in range(4): a.e(f"ds_write_b32 v{vLq}, v{vAcc+r} offset:{32*r}")
    a.e("s_mov_b64 exec, 1")
    a.e(f"s_lshl_b32 s{sT0}, s{sW}, 3"); a.e(f"s_addk_i32 s{sT0}, 6144"); a.e(f"v_mov_b32 v{vT}, s{sT0}")
    a.e(f"v_mov_b32 v{vMax}, v{vM2}")
    assert vL == vMax + 1
    if vMax % 2: raise SystemExit("vMax must be even for ds_write_b64")
    a.e(f"ds_write_b64 v{vT}, v[{vMax}:{vMax+1}]")
    a.e("s_mov_b64 exec, -1")
    a.e(f"v_lshl_add_u32 v{vLr}, v{vA_}, 5, v{vC_}"); a.e(f"v_lshlrev_b32 v{vLr}, 2, v{vLr}")
    a.e(f"v_mov_b32 v{vT}, 0")
    a.e("s_waitcnt lgkmcnt(0)"); a.e("s_barrier")
    ml = vBig
    a.e(f"ds_read_b128 v[{ml}:{ml+3}], v{vT} offset:6144"); a.e(f"ds_read_b128 v[{ml+4}:{ml+7}], v{vT} offset:6160")
    op = vBig + 8
    for w in range(4):
        a.e(f"ds_read_b32 v{op+2*w}, v{vLr} offset:{4096+512*w}"); a.e(f"ds_read_b32 v{op+2*w+1}, v{vLr} offset:{4096+512*w+64}")
    a.e("s_waitcnt lgkmcnt(8)")
    M = vBig + 16
    a.e(f"v_max_f32 v{M}, v{ml}, v{ml+2}"); a.e(f"v_max3_f32 v{M}, v{M}, v{ml+4}, v{ml+6}")
    for w in range(4):
        a.e(f"v_sub_f32 v{ml+2*w}, v{ml+2*w}, v{M}"); a.e(f"v_mul_f32 v{ml+2*w}, s{sT0+5}, v{ml+2*w}")
    for w in range(4): a.e(f"v_exp_f32 v{ml+2*w}, v{ml+2*w}")
    a.nop(1)
    Lt = M + 1
    a.e(f"v_mul_f32 v{Lt}, v{ml}, v{ml+1}")
    for w in range(1, 4): a.e(f"v_fmac_f32 v{Lt}, v{ml+2*w}, v{ml+2*w+1}")
    a.e("s_waitcnt lgkmcnt(0)")
    o0, o1 = M + 2, M + 3
    a.e(f"v_mul_f32 v{o0}, v{ml}, v{op}"); a.e(f"v_mul_f32 v{o1}, v{ml}, v{op+1}")
    for w in range(1, 4):
        a.e(f"v_fmac_f32 v{o0}, v{ml+2*w}, v{op+2*w}"); a.e(f"v_fmac_f32 v{o1}, v{ml+2*w}, v{op+2*w+1}")
    a.e(f"v_cvt_pk_bf16_f32 v{o0}, v{o0}, v{o0}"); a.e(f"v_cvt_pk_bf16_f32 v{o1}, v{o1}, v{o1}"); a.nop(2)
    build_B(0, o0, 0)
    for u in range(32):
        if u + 1 < 32: build_B((u + 1) & 1, o0 if u + 1 < 16 else o1, (u + 1) & 15)
        else: a.nop(2)
        a.wait(f"WO{u}")
        mfma(vAcc2, f"a[{4*u}:{4*u+3}]", u & 1, u == 0)
    a.e(f"s_lshl_b32 s{sT0}, s{sB}, 7"); a.e(f"s_lshl_b32 s{sT0+1}, s{sH}, 1"); a.e(f"s_add_u32 s{sT0+1}, s{sT0+1}, s{sHalf}")
    a.e(f"s_add_u32 s{sT0+2}, s{sT0+1}, s{sT0}"); a.e(f"s_lshl_b32 s{sT0+2}, s{sT0+2}, 11")
    a.e(f"s_lshl_b32 s{sT0+3}, s{sW}, 9"); a.e(f"s_add_u32 s{sT0+2}, s{sT0+2}, s{sT0+3}")
    a.e(f"s_lshl_b32 s{sT0}, s{sB}, 6"); a.e(f"s_add_u32 s{sT0+1}, s{sT0+1}, s{sT0}"); a.e(f"s_lshl_b32 s{sT0+1}, s{sT0+1}, 3")
    a.e(f"s_add_u32 s{sT0+1}, s{sT0+1}, {WS_ML}")
    a.nop(2)
    a.e("s_mov_b32 exec_lo, 0x00ff00ff"); a.e("s_mov_b32 exec_hi, 0x00ff00ff")
    a.vm("STY", f"buffer_store_dwordx4 v[{vAcc2}:{vAcc2+3}], v{vY}, s[{sWS}:{sWS+3}], s{sT0+2} offen")
    a.e("s_mov_b64 exec, 1")
    a.e(f"s_cmp_eq_u32 s{sW}, 0"); a.e("s_cbranch_scc0 L_A_noml")
    a.e(f"v_mov_b32 v{vT}, 0")
    a.vm("STML", f"buffer_store_dwordx2 v[{M}:{M+1}], v{vT}, s[{sWS}:{sWS+3}], s{sT0+1} offen")
    a.label("L_A_noml")
    if stamp:
        do_stamp()
        a.e("s_waitcnt lgkmcnt(0)")
        a.e(f"s_lshl_b32 s{sT0}, s2, 2"); a.e(f"s_add_u32 s{sT0}, s{sT0}, s{sW}"); a.e(f"s_lshl_b32 s{sT0}, s{sT0}, 6"); a.e(f"s_add_u32 s{sT0}, s{sT0}, {WS_STAMP}")
        a.e(f"s_getreg_b32 s{sT0+1}, hwreg(HW_REG_XCC_ID)")
        a.e(f"v_mov_b32 v{vT}, 0")
        n = nstamp[0]
        for i in range(n):
            a.e(f"v_mov_b32 v{vBig+2*i}, s{sStamp+2*i}"); a.e(f"v_mov_b32 v{vBig+2*i+1}, s{sStamp+2*i+1}")
        a.e(f"v_mov_b32 v{vBig+14}, s{sT0+1}"); a.e(f"v_mov_b32 v{vBig+15}, 0")
        for i in range(4):
            a.e(f"buffer_store_dwordx4 v[{vBig+4*i}:{vBig+4*i+3}], v{vT}, s[{sWS}:{sWS+3}], s{sT0} offen offset:{16*i}")
        assert n <= 7
    a.label("L_A_end")
    a.e("s_endpgm")
    return dict(vgpr=256 + 192, sgpr=96, accum=256)

def gen_B(a, P):
    kernel_header(a, KB)
    a.e("s_cmp_ge_u32 s2, 64"); a.e("s_cbranch_scc1 L_B_end")
    a.e("s_load_dwordx2 s[4:5], s[0:1], 0")
    a.e("s_load_dwordx2 s[6:7], s[0:1], 64")
    a.e("s_load_dwordx2 s[8:9], s[0:1], 80")
    a.e("v_lshrrev_b32 v2, 6, v0"); a.e("v_and_b32 v1, 63, v0"); a.e("v_readfirstlane_b32 s10, v2")
    a.e("s_lshr_b32 s11, s2, 4"); a.e("s_and_b32 s12, s2, 15")
    a.e("v_lshrrev_b32 v3, 3, v1")
    a.e("v_and_b32 v4, 7, v1")
    a.e("s_lshl_b32 s13, s11, 7"); a.e("s_lshl_b32 s14, s10, 4"); a.e("s_add_u32 s13, s13, s14"); a.e("s_lshl_b32 s13, s13, 11")
    a.e("s_lshl_b32 s14, s12, 7"); a.e("s_add_u32 s13, s13, s14")
    a.e("v_lshlrev_b32 v5, 11, v3"); a.e("v_lshl_add_u32 v5, v4, 4, v5"); a.e("v_add_u32 v5, s13, v5")
    a.e("s_lshl_b32 s13, s11, 6"); a.e("s_lshl_b32 s14, s10, 4"); a.e("s_add_u32 s13, s13, s14"); a.e("s_lshl_b32 s13, s13, 3")
    a.e(f"s_add_u32 s13, s13, {WS_ML}")
    a.e("v_and_b32 v6, 6, v3"); a.e("v_lshlrev_b32 v6, 3, v6"); a.e("v_add_u32 v6, s13, v6")
    a.e("s_waitcnt lgkmcnt(0)")
    def srd(dst, src, nbytes):
        a.e(f"s_mov_b32 s{dst}, s{src}"); a.e(f"s_and_b32 s{dst+1}, s{src+1}, 0xffff")
        a.e(f"s_mov_b32 s{dst+2}, {nbytes}"); a.e(f"s_mov_b32 s{dst+3}, 0x20000")
    srd(16, 8, 4 << 20)
    a.e("s_mov_b32 s28, 0x20000")
    a.e("s_mov_b32 s29, 0x24000")
    a.e("s_mov_b32 s30, 0x4000")
    a.vm("ML0", "buffer_load_dwordx4 v[8:11], v6, s[16:19], 0 offen")
    a.vm("ML1", "buffer_load_dwordx4 v[12:15], v6, s[16:19], 0 offen offset:64")
    a.vm("A0", "buffer_load_dwordx4 v[16:19], v5, s[16:19], 0 offen")
    a.vm("A1", "buffer_load_dwordx4 v[20:23], v5, s[16:19], s30 offen")
    a.vm("F0", "buffer_load_dwordx4 v[24:27], v5, s[16:19], s28 offen")
    a.vm("F1", "buffer_load_dwordx4 v[28:31], v5, s[16:19], s29 offen")
    srd(20, 4, 4096); srd(24, 6, 4096)
    a.e("v_and_b32 v32, 3, v0"); a.e("v_lshlrev_b32 v32, 3, v32"); a.e("v_bfe_u32 v33, v0, 2, 3"); a.e("v_add_u32 v32, v32, v33")
    a.e("s_lshl_b32 s13, s11, 9"); a.e("s_lshl_b32 s14, s12, 5"); a.e("s_add_u32 s13, s13, s14")
    a.e("v_add_u32 v32, s13, v32"); a.e("v_lshlrev_b32 v32, 1, v32")
    a.vm("X", "buffer_load_ushort v33, v32, s[20:23], 0 offen")
    a.e(f"s_mov_b32 s15, {f2u(LOG2E):#x}")
    a.e("v_and_b32 v34, 1, v3"); a.e("v_cmp_eq_u32 vcc, 1, v34")
    for (name, b, dst) in (("ML0", 8, 36), ("ML1", 12, 37)):
        a.wait(name)
        a.e(f"v_max_f32 v38, v{b}, v{b+2}")
        a.e(f"v_sub_f32 v{b}, v{b}, v38"); a.e(f"v_sub_f32 v{b+2}, v{b+2}, v38")
        a.e(f"v_mul_f32 v{b}, s15, v{b}"); a.e(f"v_mul_f32 v{b+2}, s15, v{b+2}")
        a.e(f"v_exp_f32 v{b}, v{b}"); a.e(f"v_exp_f32 v{b+2}, v{b+2}"); a.nop(1)
        a.e(f"v_mul_f32 v38, v{b}, v{b+1}"); a.e(f"v_fmac_f32 v38, v{b+2}, v{b+3}")
        a.e("v_rcp_f32 v38, v38")
        a.e(f"v_cndmask_b32 v{dst}, v{b}, v{b+2}, vcc")
        a.e(f"v_mul_f32 v{dst}, v{dst}, v38")
    a.wait("A1")
    for r in range(4):
        a.e(f"v_mul_f32 v{40+r}, v36, v{16+r}"); a.e(f"v_fmac_f32 v{40+r}, v37, v{20+r}")
    a.wait("F1")
    for r in range(4): a.e(f"v_add_f32 v{44+r}, v{24+r}, v{28+r}")
    a.e("v_lshlrev_b32 v35, 7, v3"); a.e("v_lshl_add_u32 v35, v4, 4, v35"); a.e("s_lshl_b32 s13, s10, 10"); a.e("v_add_u32 v35, s13, v35")
    a.e("ds_write_b128 v35, v[40:43]"); a.e("ds_write_b128 v35, v[44:47] offset:4096")
    a.e("s_waitcnt lgkmcnt(0)"); a.e("s_barrier")
    a.e("v_and_b32 v48, 31, v0"); a.e("v_lshrrev_b32 v49, 5, v0")
    a.e("v_lshlrev_b32 v50, 10, v49"); a.e("v_lshl_add_u32 v50, v48, 2, v50")
    for i in range(8): a.e(f"ds_read_b32 v{52+i}, v50 offset:{128*i}")
    a.e("s_waitcnt lgkmcnt(0)")
    a.e("v_add_f32 v52, v52, v53"); a.e("v_add_f32 v54, v54, v55"); a.e("v_add_f32 v56, v56, v57"); a.e("v_add_f32 v58, v58, v59")
    a.e("v_add_f32 v52, v52, v54"); a.e("v_add_f32 v56, v56, v58"); a.e("v_add_f32 v52, v52, v56")
    a.e("s_barrier")
    a.e("v_lshlrev_b32 v50, 2, v0"); a.e("ds_write_b32 v50, v52")
    a.e("s_waitcnt lgkmcnt(0)"); a.e("s_barrier")
    a.e("v_cmp_gt_u32 vcc, 32, v0"); a.e("s_and_saveexec_b64 s[32:33], vcc"); a.e("s_cbranch_execz L_B_end")
    for i in range(8): a.e(f"ds_read_b32 v{52+i}, v50 offset:{128*i}")
    a.e("s_waitcnt lgkmcnt(0)")
    a.e("v_add_f32 v52, v52, v53"); a.e("v_add_f32 v54, v54, v55"); a.e("v_add_f32 v52, v52, v54")
    a.e("v_add_f32 v56, v56, v57"); a.e("v_add_f32 v58, v58, v59"); a.e("v_add_f32 v56, v56, v58")
    round_bf16(a, 52, 52); round_bf16(a, 56, 56)
    a.wait("X")
    a.e("v_lshlrev_b32 v33, 16, v33")
    a.e("v_add_f32 v52, v33, v52"); round_bf16(a, 52, 52)
    a.e("v_add_f32 v52, v52, v56"); a.e("v_cvt_pk_bf16_f32 v52, v52, v52")
    a.e("buffer_store_short v52, v32, s[24:27], 0 offen")
    a.label("L_B_end")
    a.e("s_endpgm")
    return dict(vgpr=64, sgpr=40, accum=64)

def build(P):
    a = Asm()
    a.raw(f"; @launch kernel={KA} grid=(256,1,1) block=(256,1,1) lds=8192")
    a.raw(f"; @launch kernel={KB} grid=(64,1,1) block=(256,1,1) lds=8192")
    a.raw('.amdgcn_target "amdgcn-amd-amdhsa--gfx950"')
    ra = gen_A(a, P)
    a.reset_vm()
    rb = gen_B(a, P)
    kernel_desc(a, KA, **ra); kernel_desc(a, KB, **rb)
    return a.text()

if __name__ == "__main__":
    out = sys.argv[1] if len(sys.argv) > 1 else f"cdna_kernels/{NAME}.s"
    P = eval("dict(" + (sys.argv[2] if len(sys.argv) > 2 else "") + ")")
    open(out, "w").write(build(P))
    print("wrote", out)
```

```python
import sys, struct
from asmlib import *
NAME = "parallel_sum__mha_block_cached__dense_activation_silu__decode"
KA = NAME + "_kernel"
KB = "fin_kernel"

def f2u(x): return struct.unpack("<I", struct.pack("<f", x))[0]
LOG2E = 1.4426950408889634
SCALE = 128 ** -0.5

WS_Y = 0
WS_ML = 1 << 20
WS_STAMP = 2 << 20

def round_bf16(a, dst, src):
    a.e(f"v_cvt_pk_bf16_f32 v{dst}, v{src}, v{src}")
    a.e(f"v_and_b32 v{dst}, 0xffff0000, v{dst}")

def row_allreduce(a, op, v):
    for ctl in ("quad_perm:[1,0,3,2]", "quad_perm:[2,3,0,1]", "row_ror:4", "row_ror:8"):
        a.nop(2)
        a.e(f"{op}_dpp v{v}, v{v}, v{v} {ctl} row_mask:0xf bank_mask:0xf")

def wave_allreduce(a, op, v, s):
    row_allreduce(a, op, v)
    a.nop(1)
    for i in range(4):
        a.e(f"v_readlane_b32 s{s+i}, v{v}, {16*i}")
    a.nop(2)
    a.e(f"v_mov_b32 v{v}, s{s}")
    for i in range(1, 4):
        a.e(f"{op} v{v}, s{s+i}, v{v}")

def gen_A(a, P):
    D = P.get("D", 32)
    NT = P.get("nt", "nt")
    WNT = P.get("wnt", "nt")
    stamp = P.get("stamp", False)
    rot = P.get("rot", None)
    RING = 256 - 4 * D
    def slot(sig): return RING + 4 * (sig % D)
    vLane, vM0, vMF, vPlo, vPhi = 1, 2, 6, 7, 8
    vK, vWQ, vW1, vW2, vWO = 9, 10, 11, 12, 13
    vQ = 14; vS = 18; vR02, vR13, vR = 22, 23, 27
    vMax, vL, vT = 24, 25, 26
    vB = (28, 32); vAcc = 36; vAcc2 = 40
    vTmp = 44
    vSc = 64
    vBig = 96
    assert RING >= 128 - 0 and RING >= vBig + 32 - 0 or True
    sK, sV, sWQ, sWO, sW1, sW2, sX, sWS = 24, 28, 32, 36, 40, 44, 48, 52
    sW, sH, sB, sHalf, sXc, sJ, sU = 56, 57, 58, 59, 60, 61, 62
    sOffK, sOffV, sOffW, sT0 = 63, 64, 65, 66
    sStamp = 76
    nstamp = [0]
    def do_stamp():
        if stamp:
            a.e(f"s_memrealtime s[{sStamp+2*nstamp[0]}:{sStamp+2*nstamp[0]+1}]")
            nstamp[0] += 1

    kernel_header(a, KA)
    a.e("s_cmp_ge_u32 s2, 256"); a.e("s_cbranch_scc1 L_A_end")
    do_stamp()
    a.e("s_load_dwordx16 s[4:19], s[0:1], 0")
    a.e("s_load_dwordx2 s[20:21], s[0:1], 80")
    a.e(f"v_lshrrev_b32 v{vT}, 6, v0")
    a.e(f"v_and_b32 v{vLane}, 63, v0")
    a.e(f"v_readfirstlane_b32 s{sW}, v{vT}")
    a.e(f"s_and_b32 s{sXc}, s2, 7"); a.e(f"s_lshr_b32 s{sJ}, s2, 3")
    a.e(f"s_lshr_b32 s{sT0}, s{sJ}, 3"); a.e(f"s_lshl_b32 s{sH}, s{sXc}, 2"); a.e(f"s_add_u32 s{sH}, s{sH}, s{sT0}")
    a.e(f"s_lshr_b32 s{sB}, s{sJ}, 1"); a.e(f"s_and_b32 s{sB}, s{sB}, 3"); a.e(f"s_and_b32 s{sHalf}, s{sJ}, 1")
    a.e(f"s_lshl_b32 s{sU}, s{sT0}, 1"); a.e(f"s_add_u32 s{sU}, s{sU}, s{sHalf}")
    vA_, vC_ = vTmp, vTmp + 1
    a.e(f"v_lshrrev_b32 v{vA_}, 4, v{vLane}"); a.e(f"v_and_b32 v{vC_}, 15, v{vLane}")
    a.e(f"s_lshl_b32 s{sT0+1}, s{sB}, 5"); a.e(f"s_add_u32 s{sT0+1}, s{sT0+1}, s{sH}"); a.e(f"s_lshl_b32 s{sT0+1}, s{sT0+1}, 20")
    a.e(f"s_lshl_b32 s{sT0+2}, s{sHalf}, 19"); a.e(f"s_add_u32 s{sT0+1}, s{sT0+1}, s{sT0+2}")
    a.e(f"s_lshl_b32 s{sT0+2}, s{sW}, 10"); a.e(f"s_add_u32 s{sT0+1}, s{sT0+1}, s{sT0+2}")
    a.e(f"v_lshlrev_b32 v{vK}, 4, v{vLane}"); a.e(f"v_add_u32 v{vK}, s{sT0+1}, v{vK}")
    a.e(f"s_lshl_b32 s{sT0+1}, s{sW}, 20"); a.e(f"s_lshl_b32 s{sT0+2}, s{sH}, 8"); a.e(f"s_add_u32 s{sT0+1}, s{sT0+1}, s{sT0+2}")
    a.e(f"v_lshlrev_b32 v{vWQ}, 18, v{vA_}"); a.e(f"v_lshl_add_u32 v{vWQ}, v{vC_}, 4, v{vWQ}"); a.e(f"v_add_u32 v{vWQ}, s{sT0+1}, v{vWQ}")
    vX1, vX2 = vTmp + 2, vTmp + 3
    a.e(f"s_lshl_b32 s{sT0+1}, s{sB}, 10")
    a.e(f"v_lshlrev_b32 v{vX1}, 4, v{vLane}"); a.e(f"v_add_u32 v{vX1}, s{sT0+1}, v{vX1}")
    a.e(f"s_lshl_b32 s{sT0+2}, s{sW}, 8"); a.e(f"s_add_u32 s{sT0+1}, s{sT0+1}, s{sT0+2}")
    a.e(f"v_lshlrev_b32 v{vX2}, 2, v{vLane}"); a.e(f"v_add_u32 v{vX2}, s{sT0+1}, v{vX2}")
    a.e("s_waitcnt lgkmcnt(0)")
    def srd(dst, src, nbytes):
        a.e(f"s_mov_b32 s{dst}, s{src}"); a.e(f"s_and_b32 s{dst+1}, s{src+1}, 0xffff")
        a.e(f"s_mov_b32 s{dst+2}, {nbytes}"); a.e(f"s_mov_b32 s{dst+3}, 0x20000")
    srd(sX, 4, 4096); srd(sWQ, 10, 512 * 4096 * 2); srd(sK, 6, 128 << 20)
    vX1d, vX2d = vTmp + 4, vTmp + 8
    a.vm("X1", f"buffer_load_dwordx4 v[{vX1d}:{vX1d+3}], v{vX1}, s[{sX}:{sX+3}], 0 offen")
    a.vm("X2", f"buffer_load_dword v{vX2d}, v{vX2}, s[{sX}:{sX+3}], 0 offen")
    mask = (512 << 10) - 1
    if rot == "hash":
        a.e(f"s_mul_i32 s{sOffK}, s2, 0x9E3779B1"); a.e(f"s_lshr_b32 s{sOffK}, s{sOffK}, 25"); a.e(f"s_lshl_b32 s{sOffK}, s{sOffK}, 12")
    else:
        a.e(f"s_mov_b32 s{sOffK}, 0")
    a.e(f"s_mov_b32 s{sOffV}, s{sOffK}")
    a.e(f"s_mov_b32 s{sOffW}, 0")
    state = {"next": 0}
    def issue_stream():
        sig = state["next"]
        if sig >= 256: return
        state["next"] += 1
        r = slot(sig)
        if sig < 128:
            a.vm(f"S{sig}", f"buffer_load_dwordx4 v[{r}:{r+3}], v{vK}, s[{sK}:{sK+3}], s{sOffK} offen {NT}")
            so = sOffK
        else:
            a.vm(f"S{sig}", f"buffer_load_dwordx4 v[{r}:{r+3}], v{vK}, s[{sV}:{sV+3}], s{sOffV} offen {NT}")
            so = sOffV
        a.e(f"s_addk_i32 s{so}, 0x1000")
        if rot: a.e(f"s_and_b32 s{so}, s{so}, {mask}")
    def issue_wq(t):
        a.vm(f"WQ{t}", f"buffer_load_dwordx4 a[{4*t}:{4*t+3}], v{vWQ}, s[{sWQ}:{sWQ+3}], s{sOffW} offen {WNT}")
        a.e(f"s_addk_i32 s{sOffW}, 0x2000")
    pat = P.get("pro", [(1, 1)] * 32)
    pro = []
    nwq = 0; nst = 0
    for (x, y) in pat:
        for _ in range(x):
            if nwq < 32: pro.append(("wq", nwq)); nwq += 1
        for _ in range(y):
            if nst < D: pro.append(("st", nst)); nst += 1
    while nwq < 32: pro.append(("wq", nwq)); nwq += 1
    while nst < D: pro.append(("st", nst)); nst += 1
    pro_pos = [0]
    def pro_issue(n):
        for _ in range(n):
            if pro_pos[0] >= len(pro): return
            k, i = pro[pro_pos[0]]; pro_pos[0] += 1
            if k == "wq": issue_wq(i)
            else: issue_stream()
    def ensure_issued(name):
        while name not in a.issued: pro_issue(1)
    first = P.get("pro_first", 12)
    pro_issue(8)
    srd(sV, 8, 128 << 20); srd(sWO, 12, 4096 * 512 * 2); srd(sW1, 16, 512 * 1792 * 2); srd(sW2, 18, 1792 * 512 * 2)
    srd(sWS, 20, 4 << 20)
    pro_issue(first - 8)
    a.e(f"s_cmp_eq_u32 s{sU}, 7")
    a.e(f"s_cselect_b32 s{sW1+2}, 0, s{sW1+2}"); a.e(f"s_cselect_b32 s{sW2+2}, 0, s{sW2+2}")
    a.e(f"s_mul_i32 s{sT0+1}, s{sXc}, 7"); a.e(f"s_add_u32 s{sT0+1}, s{sT0+1}, s{sU}"); a.e(f"s_lshl_b32 s{sT0+1}, s{sT0+1}, 5")
    a.e(f"s_mul_i32 s{sT0+2}, s{sW}, {128*3584}"); a.e(f"s_lshl_b32 s{sT0+3}, s{sT0+1}, 1"); a.e(f"s_add_u32 s{sT0+2}, s{sT0+2}, s{sT0+3}")
    a.e(f"v_mul_u32_u24 v{vW1}, {32*3584}, v{vA_}"); a.e(f"v_lshl_add_u32 v{vW1}, v{vC_}, 2, v{vW1}"); a.e(f"v_add_u32 v{vW1}, s{sT0+2}, v{vW1}")
    a.e(f"s_lshl_b32 s{sT0+2}, s{sT0+1}, 10"); a.e(f"s_lshl_b32 s{sT0+3}, s{sW}, 8"); a.e(f"s_add_u32 s{sT0+2}, s{sT0+2}, s{sT0+3}")
    a.e(f"v_lshlrev_b32 v{vW2}, 13, v{vA_}"); a.e(f"v_lshl_add_u32 v{vW2}, v{vC_}, 4, v{vW2}"); a.e(f"v_add_u32 v{vW2}, s{sT0+2}, v{vW2}")
    a.e(f"s_lshl_b32 s{sT0+2}, s{sH}, 17"); a.e(f"s_add_u32 s{sT0+2}, s{sT0+2}, s{sT0+3}")
    a.e(f"v_lshlrev_b32 v{vWO}, 15, v{vA_}"); a.e(f"v_lshl_add_u32 v{vWO}, v{vC_}, 4, v{vWO}"); a.e(f"v_add_u32 v{vWO}, s{sT0+2}, v{vWO}")
    t0, t1 = vTmp + 10, vTmp + 11
    a.e(f"v_and_b32 v{t0}, 1, v{vC_}"); a.e(f"v_cmp_eq_u32 vcc, 1, v{t0}")
    a.e(f"v_mov_b32 v{t0}, 0xffff"); a.e(f"v_mov_b32 v{t1}, 0xffff0000")
    a.e(f"v_cndmask_b32 v{t0}, v{t0}, v{t1}, vcc")
    a.e(f"v_lshrrev_b32 v{t1}, 1, v{vC_}")
    for r in range(4):
        a.e(f"v_cmp_eq_u32 vcc, {r}, v{t1}"); a.nop(2)
        a.e(f"v_cndmask_b32 v{vM0+r}, 0, v{t0}, vcc")
    a.e(f"v_cmp_gt_u32 vcc, 2, v{vC_}"); a.nop(2); a.e(f"v_cndmask_b32 v{vMF}, 0, v{t0}, vcc")
    vLq, vLr = vTmp + 12, vTmp + 13
    a.wait("X2")
    do_stamp()
    spr = P.get("sprinkle", 1)
    X = vBig
    for i in range(4):
        a.e(f"v_lshlrev_b32 v{X+2*i}, 16, v{vX1d+i}"); a.e(f"v_and_b32 v{X+2*i+1}, 0xffff0000, v{vX1d+i}")
    sm = vBig + 8
    a.e(f"v_add_f32 v{sm}, v{X}, v{X+1}"); a.e(f"v_add_f32 v{sm+1}, v{X+2}, v{X+3}"); a.e(f"v_add_f32 v{sm+2}, v{X+4}, v{X+5}"); a.e(f"v_add_f32 v{sm+3}, v{X+6}, v{X+7}")
    a.e(f"v_add_f32 v{sm}, v{sm}, v{sm+1}"); a.e(f"v_add_f32 v{sm+2}, v{sm+2}, v{sm+3}"); a.e(f"v_add_f32 v{sm}, v{sm}, v{sm+2}")
    pro_issue(spr)
    wave_allreduce(a, "v_add_f32", sm, sT0)
    pro_issue(spr)
    a.e(f"v_mul_f32 v{sm}, {f2u(1/512):#x}, v{sm}")
    for i in range(8): a.e(f"v_sub_f32 v{X+i}, v{X+i}, v{sm}")
    va = sm + 1
    a.e(f"v_mul_f32 v{va}, v{X}, v{X}")
    for i in range(1, 8): a.e(f"v_fmac_f32 v{va}, v{X+i}, v{X+i}")
    pro_issue(spr)
    wave_allreduce(a, "v_add_f32", va, sT0)
    pro_issue(spr)
    a.e(f"v_mul_f32 v{va}, {f2u(1/512):#x}, v{va}")
    mb, den, rd = sm + 2, sm + 3, sm + 4
    round_bf16(a, mb, sm); round_bf16(a, va, va)
    a.e(f"v_add_f32 v{va}, {f2u(1e-5):#x}, v{va}"); round_bf16(a, va, va)
    a.e(f"v_sqrt_f32 v{den}, v{va}"); a.nop(1); round_bf16(a, den, den)
    a.e(f"v_rcp_f32 v{rd}, v{den}")
    pro_issue(spr)
    xa, xb = sm + 5, sm + 6
    a.e(f"v_lshlrev_b32 v{xa}, 16, v{vX2d}"); a.e(f"v_and_b32 v{xb}, 0xffff0000, v{vX2d}")
    for (xx, dstP) in ((xa, vPlo), (xb, vPhi)):
        q0, ee = sm + 7, sm + 8
        a.e(f"v_sub_f32 v{xx}, v{xx}, v{mb}"); round_bf16(a, xx, xx)
        a.e(f"v_mul_f32 v{q0}, v{xx}, v{rd}"); a.e(f"v_fma_f32 v{ee}, -v{q0}, v{den}, v{xx}"); a.e(f"v_fma_f32 v{q0}, v{ee}, v{rd}, v{q0}")
        a.e(f"v_cvt_pk_bf16_f32 v{dstP}, v{q0}, v{q0}")
    a.nop(2)
    def build_B(set_, src, bc, maskbase=None, per_r_src=None):
        for r in range(4):
            s_ = src if per_r_src is None else per_r_src[r][0]
            b_ = bc if per_r_src is None else per_r_src[r][1]
            m_ = (vM0 + r) if maskbase is None else maskbase
            a.e(f"v_and_b32_dpp v{vB[set_]+r}, v{s_}, v{m_} row_newbcast:{b_} row_mask:0xf bank_mask:0xf")
    def mfma(acc, A, set_, first):
        c = "0" if first else f"v[{acc}:{acc+3}]"
        a.e(f"v_mfma_f32_16x16x32_bf16 v[{acc}:{acc+3}], {A}, v[{vB[set_]}:{vB[set_]+3}], {c}")
    build_B(0, vPlo, 0)
    for t in range(32):
        if t + 1 < 32: build_B((t + 1) & 1, vPhi if (t + 1) & 1 else vPlo, (t + 1) >> 1)
        else: a.nop(2)
        ensure_issued(f"WQ{t}")
        a.wait(f"WQ{t}")
        mfma(vAcc2, f"a[{4*t}:{4*t+3}]", t & 1, t == 0)
        pro_issue(P.get("qissue", 2))
    pro_issue(1000)
    a.nop(8)
    a.e(f"s_lshl_b32 s{sT0}, s{sW}, 9")
    a.e(f"v_lshlrev_b32 v{vLq}, 7, v{vA_}"); a.e(f"v_lshl_add_u32 v{vLq}, v{vC_}, 2, v{vLq}"); a.e(f"v_add_u32 v{vLq}, s{sT0}, v{vLq}")
    a.e("s_mov_b32 exec_lo, 0x00ff00ff"); a.e("s_mov_b32 exec_hi, 0x00ff00ff")
    for r in range(4): a.e(f"ds_write_b32 v{vLq}, v{vAcc2+r} offset:{32*r}")
    a.e("s_mov_b64 exec, -1")
    a.e(f"v_lshlrev_b32 v{vLr}, 5, v{vC_}")
    a.e("s_waitcnt lgkmcnt(0)"); a.e("s_barrier")
    for w in range(4):
        for hh in range(2):
            a.e(f"ds_read_b128 v[{vBig+8*w+4*hh}:{vBig+8*w+4*hh+3}], v{vLr} offset:{512*w+16*hh}")
    a.e("s_waitcnt lgkmcnt(0)")
    for i in range(8):
        a.e(f"v_add_f32 v{vBig+i}, v{vBig+i}, v{vBig+8+i}"); a.e(f"v_add_f32 v{vBig+16+i}, v{vBig+16+i}, v{vBig+24+i}")
    for i in range(8): a.e(f"v_add_f32 v{vBig+i}, v{vBig+i}, v{vBig+16+i}")
    for i in range(4): a.e(f"v_cvt_pk_bf16_f32 v{vQ+i}, v{vBig+2*i}, v{vBig+2*i+1}")
    do_stamp()
    extras = {}
    def add_extra(G, fn): extras.setdefault(G, []).append(fn)
    def mk_wo(u):
        def f():
            so = "0" if u < 4 else f"s{sOffW}"
            if u >= 4 and u % 4 == 0:
                a.e(f"s_mov_b32 s{sOffW}, {u*1024}")
            a.vm(f"WO{u}", f"buffer_load_dwordx4 a[{4*u}:{4*u+3}], v{vWO}, s[{sWO}:{sWO+3}], {so} offen offset:{(u%4)*1024} {WNT}")
        return f
    def mk_w1(u, r):
        def f():
            a.e(f"s_mov_b32 s{sT0+7}, {(4*u+r)*3584}")
            a.vm(f"W1_{u}_{r}", f"buffer_load_dword a{128+4*u+r}, v{vW1}, s[{sW1}:{sW1+3}], s{sT0+7} offen {WNT}")
        return f
    def mk_w2(u):
        def f():
            if u == 4: a.e(f"s_mov_b32 s{sT0+6}, 4096")
            so = "0" if u < 4 else f"s{sT0+6}"
            a.vm(f"W2_{u}", f"buffer_load_dwordx4 a[{160+4*u}:{160+4*u+3}], v{vW2}, s[{sW2}:{sW2+3}], {so} offen offset:{(u%4)*1024} {WNT}")
        return f
    g0 = P.get("ffn_g0", 0)
    for u in range(8):
        for r in range(4): add_extra(g0 + u, mk_w1(u, r))
        add_extra(g0 + u, mk_w2(u))
    wo0 = P.get("wo_g0", 8); wo_per = P.get("wo_per", 2)
    for u in range(32): add_extra(wo0 + u // wo_per, mk_wo(u))
    a.e(f"v_mov_b32 v{vMax}, 0xff800000")
    for G in range(32):
        a.wait(f"S{4*G+3}")
        for i in range(4):
            for tau in range(4):
                r = slot(4 * G + tau)
                if i == 0: a.e(f"v_dot2_f32_bf16 v{vS+tau}, v{r}, v{vQ}, 0")
                else: a.e(f"v_dot2c_f32_bf16 v{vS+tau}, v{r+i}, v{vQ+i}")
        a.e(f"v_add_f32_dpp v{vR02}, v{vS}, v{vS} row_ror:8 row_mask:0xf bank_mask:0xf")
        a.e(f"v_add_f32_dpp v{vR13}, v{vS+1}, v{vS+1} row_ror:8 row_mask:0xf bank_mask:0xf")
        a.e(f"v_add_f32_dpp v{vR02}, v{vS+2}, v{vS+2} row_ror:8 row_mask:0xf bank_mask:0xc")
        a.e(f"v_add_f32_dpp v{vR13}, v{vS+3}, v{vS+3} row_ror:8 row_mask:0xf bank_mask:0xc")
        issue_stream(); a.nop(1)
        a.e(f"v_add_f32_dpp v{vR}, v{vR02}, v{vR02} row_ror:12 row_mask:0xf bank_mask:0x5")
        a.e(f"v_add_f32_dpp v{vR}, v{vR13}, v{vR13} row_ror:4 row_mask:0xf bank_mask:0xa")
        issue_stream(); a.nop(1)
        a.e(f"v_add_f32_dpp v{vR}, v{vR}, v{vR} quad_perm:[1,0,3,2] row_mask:0xf bank_mask:0xf")
        issue_stream(); a.nop(1)
        a.e(f"v_add_f32_dpp v{vSc+G}, v{vR}, v{vR} quad_perm:[2,3,0,1] row_mask:0xf bank_mask:0xf")
        issue_stream()
        a.e(f"v_max_f32 v{vMax}, v{vMax}, v{vSc+G}")
        for f in extras.get(G, []): f()
    do_stamp()
    wave_allreduce(a, "v_max_f32", vMax, sT0)
    vM2, vML = vTmp + 14, vTmp + 15
    round_bf16(a, vM2, vMax); a.e(f"v_mul_f32 v{vM2}, {f2u(SCALE):#x}, v{vM2}"); round_bf16(a, vM2, vM2)
    a.e(f"v_mul_f32 v{vML}, {f2u(-LOG2E):#x}, v{vM2}")
    for u in range(8):
        build_B(u & 1, None, None, maskbase=vMF, per_r_src=[((vPhi if r & 1 else vPlo), 2 * u + (r >> 1)) for r in range(4)])
        a.wait(f"W1_{u}_3"); a.nop(2)
        mfma(vAcc2, f"a[{128+4*u}:{128+4*u+3}]", u & 1, u == 0)
    a.nop(8)
    a.e(f"s_lshl_b32 s{sT0}, s{sW}, 7"); a.e(f"s_addk_i32 s{sT0}, 2048")
    a.e(f"v_lshlrev_b32 v{vLq}, 5, v{vA_}"); a.e(f"v_lshl_add_u32 v{vLq}, v{vC_}, 2, v{vLq}"); a.e(f"v_add_u32 v{vLq}, s{sT0}, v{vLq}")
    a.e("s_mov_b32 exec_lo, 0x00030003"); a.e("s_mov_b32 exec_hi, 0x00030003")
    for r in range(4): a.e(f"ds_write_b32 v{vLq}, v{vAcc2+r} offset:{8*r}")
    a.e("s_mov_b64 exec, -1")
    a.e(f"v_and_b32 v{vLr}, 7, v{vC_}"); a.e(f"v_lshl_add_u32 v{vLr}, v{vA_}, 3, v{vLr}"); a.e(f"v_lshlrev_b32 v{vLr}, 2, v{vLr}")
    a.e("s_waitcnt lgkmcnt(0)"); a.e("s_barrier")
    for w in range(4): a.e(f"ds_read_b32 v{vBig+w}, v{vLr} offset:{2048+128*w}")
    a.e("s_waitcnt lgkmcnt(0)")
    hs, he = vBig, vBig + 1
    a.e(f"v_add_f32 v{vBig}, v{vBig}, v{vBig+1}"); a.e(f"v_add_f32 v{vBig+2}, v{vBig+2}, v{vBig+3}"); a.e(f"v_add_f32 v{hs}, v{vBig}, v{vBig+2}")
    round_bf16(a, hs, hs)
    a.e(f"v_mul_f32 v{he}, {f2u(-LOG2E):#x}, v{hs}"); a.e(f"v_exp_f32 v{he}, v{he}"); a.nop(1)
    a.e(f"v_add_f32 v{he}, 1.0, v{he}"); a.e(f"v_rcp_f32 v{he}, v{he}"); a.nop(1)
    a.e(f"v_mul_f32 v{hs}, v{hs}, v{he}")
    vPh = vBig + 2
    a.e(f"v_cvt_pk_bf16_f32 v{vPh}, v{hs}, v{hs}"); a.nop(2)
    for u in range(8):
        build_B(u & 1, vPh, u)
        a.wait(f"W2_{u}"); a.nop(2)
        mfma(vAcc2, f"a[{160+4*u}:{160+4*u+3}]", u & 1, u == 0)
    vY = vTmp + 16
    a.e(f"v_lshlrev_b32 v{vY}, 7, v{vA_}"); a.e(f"v_lshl_add_u32 v{vY}, v{vC_}, 4, v{vY}")
    a.e(f"s_lshl_b32 s{sT0}, s{sB}, 7"); a.e(f"s_lshl_b32 s{sT0+1}, s{sXc}, 3"); a.e(f"s_add_u32 s{sT0+1}, s{sT0+1}, s{sU}")
    a.e(f"s_add_u32 s{sT0+1}, s{sT0+1}, 64"); a.e(f"s_add_u32 s{sT0+1}, s{sT0+1}, s{sT0}"); a.e(f"s_lshl_b32 s{sT0+1}, s{sT0+1}, 11")
    a.e(f"s_lshl_b32 s{sT0+2}, s{sW}, 9"); a.e(f"s_add_u32 s{sT0+1}, s{sT0+1}, s{sT0+2}")
    a.nop(4)
    a.e("s_mov_b32 exec_lo, 0x00ff00ff"); a.e("s_mov_b32 exec_hi, 0x00ff00ff")
    a.vm("STF", f"buffer_store_dwordx4 v[{vAcc2}:{vAcc2+3}], v{vY}, s[{sWS}:{sWS+3}], s{sT0+1} offen")
    a.e("s_mov_b64 exec, -1")
    do_stamp()
    a.e(f"v_mov_b32 v{vL}, 0")
    def prep(G):
        s = vSc + G
        round_bf16(a, s, s); a.e(f"v_mul_f32 v{s}, {f2u(SCALE):#x}, v{s}"); round_bf16(a, s, s)
        a.e(f"v_fma_f32 v{s}, v{s}, s{sT0+5}, v{vML}"); a.e(f"v_exp_f32 v{s}, v{s}"); a.nop(1)
        a.e(f"v_add_f32 v{vL}, v{vL}, v{s}"); a.e(f"v_cvt_pk_bf16_f32 v{s}, v{s}, v{s}")
    a.e(f"s_mov_b32 s{sT0+5}, {f2u(LOG2E):#x}")
    prep(0); prep(1)
    build_B(0, vSc, 0)
    for t in range(128):
        G, tau = t // 4, t % 4
        if t + 1 < 128: build_B((t + 1) & 1, vSc + (t + 1) // 4, 4 * ((t + 1) % 4))
        else: a.nop(2)
        a.wait(f"S{128+t}")
        r = slot(128 + t)
        mfma(vAcc, f"v[{r}:{r+3}]", t & 1, t == 0)
        issue_stream()
        if tau == 0 and G + 2 < 32: prep(G + 2)
    do_stamp()
    wave_allreduce(a, "v_add_f32", vL, sT0)
    a.e(f"v_mul_f32 v{vL}, {f2u(0.25):#x}, v{vL}")
    a.e(f"s_lshl_b32 s{sT0}, s{sW}, 9"); a.e(f"s_addk_i32 s{sT0}, 4096")
    a.e(f"v_lshlrev_b32 v{vLq}, 7, v{vA_}"); a.e(f"v_lshl_add_u32 v{vLq}, v{vC_}, 2, v{vLq}"); a.e(f"v_add_u32 v{vLq}, s{sT0}, v{vLq}")
    a.e("s_mov_b32 exec_lo, 0x00ff00ff"); a.e("s_mov_b32 exec_hi, 0x00ff00ff")
    for r in range(4): a.e(f"ds_write_b32 v{vLq}, v{vAcc+r} offset:{32*r}")
    a.e("s_mov_b64 exec, 1")
    a.e(f"s_lshl_b32 s{sT0}, s{sW}, 3"); a.e(f"s_addk_i32 s{sT0}, 6144"); a.e(f"v_mov_b32 v{vT}, s{sT0}")
    a.e(f"v_mov_b32 v{vMax}, v{vM2}")
    assert vL == vMax + 1
    if vMax % 2: raise SystemExit("vMax must be even for ds_write_b64")
    a.e(f"ds_write_b64 v{vT}, v[{vMax}:{vMax+1}]")
    a.e("s_mov_b64 exec, -1")
    a.e(f"v_lshl_add_u32 v{vLr}, v{vA_}, 5, v{vC_}"); a.e(f"v_lshlrev_b32 v{vLr}, 2, v{vLr}")
    a.e(f"v_mov_b32 v{vT}, 0")
    a.e("s_waitcnt lgkmcnt(0)"); a.e("s_barrier")
    ml = vBig
    a.e(f"ds_read_b128 v[{ml}:{ml+3}], v{vT} offset:6144"); a.e(f"ds_read_b128 v[{ml+4}:{ml+7}], v{vT} offset:6160")
    op = vBig + 8
    for w in range(4):
        a.e(f"ds_read_b32 v{op+2*w}, v{vLr} offset:{4096+512*w}"); a.e(f"ds_read_b32 v{op+2*w+1}, v{vLr} offset:{4096+512*w+64}")
    a.e("s_waitcnt lgkmcnt(8)")
    M = vBig + 16
    a.e(f"v_max_f32 v{M}, v{ml}, v{ml+2}"); a.e(f"v_max3_f32 v{M}, v{M}, v{ml+4}, v{ml+6}")
    for w in range(4):
        a.e(f"v_sub_f32 v{ml+2*w}, v{ml+2*w}, v{M}"); a.e(f"v_mul_f32 v{ml+2*w}, s{sT0+5}, v{ml+2*w}")
    for w in range(4): a.e(f"v_exp_f32 v{ml+2*w}, v{ml+2*w}")
    a.nop(1)
    Lt = M + 1
    a.e(f"v_mul_f32 v{Lt}, v{ml}, v{ml+1}")
    for w in range(1, 4): a.e(f"v_fmac_f32 v{Lt}, v{ml+2*w}, v{ml+2*w+1}")
    a.e("s_waitcnt lgkmcnt(0)")
    o0, o1 = M + 2, M + 3
    a.e(f"v_mul_f32 v{o0}, v{ml}, v{op}"); a.e(f"v_mul_f32 v{o1}, v{ml}, v{op+1}")
    for w in range(1, 4):
        a.e(f"v_fmac_f32 v{o0}, v{ml+2*w}, v{op+2*w}"); a.e(f"v_fmac_f32 v{o1}, v{ml+2*w}, v{op+2*w+1}")
    a.e(f"v_cvt_pk_bf16_f32 v{o0}, v{o0}, v{o0}"); a.e(f"v_cvt_pk_bf16_f32 v{o1}, v{o1}, v{o1}"); a.nop(2)
    build_B(0, o0, 0)
    for u in range(32):
        if u + 1 < 32: build_B((u + 1) & 1, o0 if u + 1 < 16 else o1, (u + 1) & 15)
        else: a.nop(2)
        a.wait(f"WO{u}")
        mfma(vAcc2, f"a[{4*u}:{4*u+3}]", u & 1, u == 0)
    a.e(f"s_lshl_b32 s{sT0}, s{sB}, 7"); a.e(f"s_lshl_b32 s{sT0+1}, s{sH}, 1"); a.e(f"s_add_u32 s{sT0+1}, s{sT0+1}, s{sHalf}")
    a.e(f"s_add_u32 s{sT0+2}, s{sT0+1}, s{sT0}"); a.e(f"s_lshl_b32 s{sT0+2}, s{sT0+2}, 11")
    a.e(f"s_lshl_b32 s{sT0+3}, s{sW}, 9"); a.e(f"s_add_u32 s{sT0+2}, s{sT0+2}, s{sT0+3}")
    a.e(f"s_lshl_b32 s{sT0}, s{sB}, 6"); a.e(f"s_add_u32 s{sT0+1}, s{sT0+1}, s{sT0}"); a.e(f"s_lshl_b32 s{sT0+1}, s{sT0+1}, 3")
    a.e(f"s_add_u32 s{sT0+1}, s{sT0+1}, {WS_ML}")
    a.nop(2)
    a.e("s_mov_b32 exec_lo, 0x00ff00ff"); a.e("s_mov_b32 exec_hi, 0x00ff00ff")
    a.vm("STY", f"buffer_store_dwordx4 v[{vAcc2}:{vAcc2+3}], v{vY}, s[{sWS}:{sWS+3}], s{sT0+2} offen")
    a.e("s_mov_b64 exec, 1")
    a.e(f"s_cmp_eq_u32 s{sW}, 0"); a.e("s_cbranch_scc0 L_A_noml")
    a.e(f"v_mov_b32 v{vT}, 0")
    a.vm("STML", f"buffer_store_dwordx2 v[{M}:{M+1}], v{vT}, s[{sWS}:{sWS+3}], s{sT0+1} offen")
    a.label("L_A_noml")
    if stamp == "dbg":
        do_stamp()
        a.e(f"s_load_dwordx2 s[{sT0}:{sT0+1}], s[0:1], 72")
        a.e("s_waitcnt lgkmcnt(0)")
        n = nstamp[0]
        a.e(f"v_mov_b32 v{vT}, 0")
        a.e(f"s_not_b32 s{sT0+2}, s{sStamp}"); a.e(f"v_mov_b32 v{vBig}, s{sT0+2}")
        a.e(f"global_atomic_umax v{vT}, v{vBig}, s[{sT0}:{sT0+1}]")
        for i in range(n):
            a.e(f"v_mov_b32 v{vBig+1+i}, s{sStamp+2*i}")
            a.e(f"global_atomic_umax v{vT}, v{vBig+1+i}, s[{sT0}:{sT0+1}] offset:{4+4*i}")
            a.e(f"s_not_b32 s{sT0+2}, s{sStamp+2*i}"); a.e(f"v_mov_b32 v{vBig+9+i}, s{sT0+2}")
            a.e(f"global_atomic_umax v{vT}, v{vBig+9+i}, s[{sT0}:{sT0+1}] offset:{4+4*7+4*i}")
    elif stamp:
        do_stamp()
        a.e("s_waitcnt lgkmcnt(0)")
        a.e(f"s_lshl_b32 s{sT0}, s2, 2"); a.e(f"s_add_u32 s{sT0}, s{sT0}, s{sW}"); a.e(f"s_lshl_b32 s{sT0}, s{sT0}, 6"); a.e(f"s_add_u32 s{sT0}, s{sT0}, {WS_STAMP}")
        a.e(f"s_getreg_b32 s{sT0+1}, hwreg(HW_REG_XCC_ID)")
        a.e(f"v_mov_b32 v{vT}, 0")
        n = nstamp[0]
        for i in range(n):
            a.e(f"v_mov_b32 v{vBig+2*i}, s{sStamp+2*i}"); a.e(f"v_mov_b32 v{vBig+2*i+1}, s{sStamp+2*i+1}")
        a.e(f"v_mov_b32 v{vBig+14}, s{sT0+1}"); a.e(f"v_mov_b32 v{vBig+15}, 0")
        for i in range(4):
            a.e(f"buffer_store_dwordx4 v[{vBig+4*i}:{vBig+4*i+3}], v{vT}, s[{sWS}:{sWS+3}], s{sT0} offen offset:{16*i}")
        assert n <= 7
    a.label("L_A_end")
    a.e("s_endpgm")
    return dict(vgpr=256 + 192, sgpr=96, accum=256)

def gen_B(a, P):
    kernel_header(a, KB)
    a.e("s_cmp_ge_u32 s2, 64"); a.e("s_cbranch_scc1 L_B_end")
    a.e("s_load_dwordx2 s[4:5], s[0:1], 0")
    a.e("s_load_dwordx2 s[6:7], s[0:1], 64")
    a.e("s_load_dwordx2 s[8:9], s[0:1], 80")
    a.e("v_lshrrev_b32 v2, 6, v0"); a.e("v_and_b32 v1, 63, v0"); a.e("v_readfirstlane_b32 s10, v2")
    a.e("s_lshr_b32 s11, s2, 4"); a.e("s_and_b32 s12, s2, 15")
    a.e("v_lshrrev_b32 v3, 3, v1")
    a.e("v_and_b32 v4, 7, v1")
    a.e("s_lshl_b32 s13, s11, 7"); a.e("s_lshl_b32 s14, s10, 4"); a.e("s_add_u32 s13, s13, s14"); a.e("s_lshl_b32 s13, s13, 11")
    a.e("s_lshl_b32 s14, s12, 7"); a.e("s_add_u32 s13, s13, s14")
    a.e("v_lshlrev_b32 v5, 11, v3"); a.e("v_lshl_add_u32 v5, v4, 4, v5"); a.e("v_add_u32 v5, s13, v5")
    a.e("s_lshl_b32 s13, s11, 6"); a.e("s_lshl_b32 s14, s10, 4"); a.e("s_add_u32 s13, s13, s14"); a.e("s_lshl_b32 s13, s13, 3")
    a.e(f"s_add_u32 s13, s13, {WS_ML}")
    a.e("v_and_b32 v6, 6, v3"); a.e("v_lshlrev_b32 v6, 3, v6"); a.e("v_add_u32 v6, s13, v6")
    a.e("s_waitcnt lgkmcnt(0)")
    def srd(dst, src, nbytes):
        a.e(f"s_mov_b32 s{dst}, s{src}"); a.e(f"s_and_b32 s{dst+1}, s{src+1}, 0xffff")
        a.e(f"s_mov_b32 s{dst+2}, {nbytes}"); a.e(f"s_mov_b32 s{dst+3}, 0x20000")
    srd(16, 8, 4 << 20)
    a.e("s_mov_b32 s28, 0x20000")
    a.e("s_mov_b32 s29, 0x24000")
    a.e("s_mov_b32 s30, 0x4000")
    a.vm("ML0", "buffer_load_dwordx4 v[8:11], v6, s[16:19], 0 offen")
    a.vm("ML1", "buffer_load_dwordx4 v[12:15], v6, s[16:19], 0 offen offset:64")
    a.vm("A0", "buffer_load_dwordx4 v[16:19], v5, s[16:19], 0 offen")
    a.vm("A1", "buffer_load_dwordx4 v[20:23], v5, s[16:19], s30 offen")
    a.vm("F0", "buffer_load_dwordx4 v[24:27], v5, s[16:19], s28 offen")
    a.vm("F1", "buffer_load_dwordx4 v[28:31], v5, s[16:19], s29 offen")
    srd(20, 4, 4096); srd(24, 6, 4096)
    a.e("v_and_b32 v32, 3, v0"); a.e("v_lshlrev_b32 v32, 3, v32"); a.e("v_bfe_u32 v33, v0, 2, 3"); a.e("v_add_u32 v32, v32, v33")
    a.e("s_lshl_b32 s13, s11, 9"); a.e("s_lshl_b32 s14, s12, 5"); a.e("s_add_u32 s13, s13, s14")
    a.e("v_add_u32 v32, s13, v32"); a.e("v_lshlrev_b32 v32, 1, v32")
    a.vm("X", "buffer_load_ushort v33, v32, s[20:23], 0 offen")
    a.e(f"s_mov_b32 s15, {f2u(LOG2E):#x}")
    a.e("v_and_b32 v34, 1, v3"); a.e("v_cmp_eq_u32 vcc, 1, v34")
    for (name, b, dst) in (("ML0", 8, 36), ("ML1", 12, 37)):
        a.wait(name)
        a.e(f"v_max_f32 v38, v{b}, v{b+2}")
        a.e(f"v_sub_f32 v{b}, v{b}, v38"); a.e(f"v_sub_f32 v{b+2}, v{b+2}, v38")
        a.e(f"v_mul_f32 v{b}, s15, v{b}"); a.e(f"v_mul_f32 v{b+2}, s15, v{b+2}")
        a.e(f"v_exp_f32 v{b}, v{b}"); a.e(f"v_exp_f32 v{b+2}, v{b+2}"); a.nop(1)
        a.e(f"v_mul_f32 v38, v{b}, v{b+1}"); a.e(f"v_fmac_f32 v38, v{b+2}, v{b+3}")
        a.e("v_rcp_f32 v38, v38")
        a.e(f"v_cndmask_b32 v{dst}, v{b}, v{b+2}, vcc")
        a.e(f"v_mul_f32 v{dst}, v{dst}, v38")
    a.wait("A1")
    for r in range(4):
        a.e(f"v_mul_f32 v{40+r}, v36, v{16+r}"); a.e(f"v_fmac_f32 v{40+r}, v37, v{20+r}")
    a.wait("F1")
    for r in range(4): a.e(f"v_add_f32 v{44+r}, v{24+r}, v{28+r}")
    a.e("v_lshlrev_b32 v35, 7, v3"); a.e("v_lshl_add_u32 v35, v4, 4, v35"); a.e("s_lshl_b32 s13, s10, 10"); a.e("v_add_u32 v35, s13, v35")
    a.e("ds_write_b128 v35, v[40:43]"); a.e("ds_write_b128 v35, v[44:47] offset:4096")
    a.e("s_waitcnt lgkmcnt(0)"); a.e("s_barrier")
    a.e("v_and_b32 v48, 31, v0"); a.e("v_lshrrev_b32 v49, 5, v0")
    a.e("v_lshlrev_b32 v50, 10, v49"); a.e("v_lshl_add_u32 v50, v48, 2, v50")
    for i in range(8): a.e(f"ds_read_b32 v{52+i}, v50 offset:{128*i}")
    a.e("s_waitcnt lgkmcnt(0)")
    a.e("v_add_f32 v52, v52, v53"); a.e("v_add_f32 v54, v54, v55"); a.e("v_add_f32 v56, v56, v57"); a.e("v_add_f32 v58, v58, v59")
    a.e("v_add_f32 v52, v52, v54"); a.e("v_add_f32 v56, v56, v58"); a.e("v_add_f32 v52, v52, v56")
    a.e("s_barrier")
    a.e("v_lshlrev_b32 v50, 2, v0"); a.e("ds_write_b32 v50, v52")
    a.e("s_waitcnt lgkmcnt(0)"); a.e("s_barrier")
    a.e("v_cmp_gt_u32 vcc, 32, v0"); a.e("s_and_saveexec_b64 s[32:33], vcc"); a.e("s_cbranch_execz L_B_end")
    for i in range(8): a.e(f"ds_read_b32 v{52+i}, v50 offset:{128*i}")
    a.e("s_waitcnt lgkmcnt(0)")
    a.e("v_add_f32 v52, v52, v53"); a.e("v_add_f32 v54, v54, v55"); a.e("v_add_f32 v52, v52, v54")
    a.e("v_add_f32 v56, v56, v57"); a.e("v_add_f32 v58, v58, v59"); a.e("v_add_f32 v56, v56, v58")
    round_bf16(a, 52, 52); round_bf16(a, 56, 56)
    a.wait("X")
    a.e("v_lshlrev_b32 v33, 16, v33")
    a.e("v_add_f32 v52, v33, v52"); round_bf16(a, 52, 52)
    a.e("v_add_f32 v52, v52, v56"); a.e("v_cvt_pk_bf16_f32 v52, v52, v52")
    a.e("buffer_store_short v52, v32, s[24:27], 0 offen")
    a.label("L_B_end")
    a.e("s_endpgm")
    return dict(vgpr=64, sgpr=40, accum=64)

def build(P):
    a = Asm()
    a.raw(f"; @launch kernel={KA} grid=(256,1,1) block=(256,1,1) lds=8192")
    if not P.get("aonly"): a.raw(f"; @launch kernel={KB} grid=(64,1,1) block=(256,1,1) lds=8192")
    a.raw('.amdgcn_target "amdgcn-amd-amdhsa--gfx950"')
    ra = gen_A(a, P)
    a.reset_vm()
    rb = gen_B(a, P)
    kernel_desc(a, KA, **ra); kernel_desc(a, KB, **rb)
    return a.text()

if __name__ == "__main__":
    out = sys.argv[1] if len(sys.argv) > 1 else f"cdna_kernels/{NAME}.s"
    P = eval("dict(" + (sys.argv[2] if len(sys.argv) > 2 else "") + ")")
    open(out, "w").write(build(P))
    print("wrote", out)
```
